```python
import torch

def _softmax(x, axis=-1):
    return torch.softmax(x, dim=axis)
def _gelu(x):
    return torch.nn.functional.gelu(x, approximate="tanh")
def _silu(x):
    return torch.nn.functional.silu(x)
def _sigmoid(x):
    return torch.sigmoid(x)
def _layernorm(x, axis=-1, eps=1e-5):
    m = x.mean(dim=axis, keepdim=True)
    v = x.var(dim=axis, keepdim=True, unbiased=False)
    return (x - m) / torch.sqrt(v + eps)
def _scatter_add(tgt, idx, src, axis=0):
    return tgt.clone().index_add_(axis, idx, src)
def _segment_sum(src, seg, n):
    out = torch.zeros((n,) + src.shape[1:], dtype=src.dtype)
    return out.index_add_(0, seg, src)
def _pad(x, pw):
    flat = tuple(v for pair in reversed(pw) for v in pair)
    return torch.nn.functional.pad(x, flat)

kernel_name = 'standalone__paged_block_table_kv_radixattention__decode'

def setup_inputs():

    _w = (lambda a: (lambda t: t.to(torch.bfloat16) if t.is_floating_point() else t)(torch.as_tensor(a)))
    B, H, Hkv, Dh = 1, 32, 4, 128
    Lk = 65536
    bs = 16
    nb = max(2, Lk // bs)
    P = max(1, nb // 2)
    n_phys = P + B * (nb - P)
    shared = torch.arange(P, dtype=torch.int64)
    priv = P + torch.arange(B * (nb - P), dtype=torch.int64).reshape(B, nb - P)
    bt = torch.cat([torch.tile(shared[None, :], (B, 1)), priv], dim=1)
    ctx = nb * bs - (torch.arange(1, B + 1, dtype=torch.int64) * 2654435761) % max(1, (nb * bs - P * bs) // 2)
    return {
        "q": _w((lambda *s: torch.randn(*s, dtype=torch.bfloat16) * 0.8)(B, H, Dh)),
        "k_cache": _w((lambda *s: torch.randn(*s, dtype=torch.bfloat16) * 0.8)(n_phys, bs, Hkv, Dh)),
        "v_cache": _w((lambda *s: torch.randn(*s, dtype=torch.bfloat16) * 0.05)(n_phys, bs, Hkv, Dh)),
        "block_table": _w(bt.to(torch.int64)),
        "ctx_lens": _w(torch.as_tensor(ctx).to(torch.int64)),
    }

def reference(q, k_cache, v_cache, block_table, ctx_lens):
    B, H, Dh = q.shape
    n_phys, bs, Hkv, _ = k_cache.shape
    nb = block_table.shape[1]
    Lk = nb * bs
    rep = H // Hkv
    k = k_cache[block_table].reshape(B, Lk, Hkv, Dh)
    v = v_cache[block_table].reshape(B, Lk, Hkv, Dh)
    k = (lambda x, n, axis: torch.repeat_interleave(x, n, dim=axis))(k, rep, axis=2)
    v = (lambda x, n, axis: torch.repeat_interleave(x, n, dim=axis))(v, rep, axis=2)
    scores = torch.einsum("bhd,bkhd->bhk", q, k) * (Dh ** -0.5)
    pos = torch.arange(Lk)
    valid = pos[None, :] < ctx_lens[:, None]
    scores = torch.where(valid[:, None, :], scores, -1e9)
    p = _softmax(scores, axis=-1)
    return torch.einsum("bhk,bkhd->bhd", p, v)
```

```python
import sys

NAME = "standalone__paged_block_table_kv_radixattention__decode"

HEADER = """; Kernarg layout for this problem (64 bytes, ptrs only, base s[0:1]):
;   offset   0: d_in[0] q  shape=(1, 32, 128) dtype=bfloat16 strides=(8192, 256, 2) contiguous=True
;   offset   8: d_in[1] k_cache  shape=(4096, 16, 4, 128) dtype=bfloat16 strides=(16384, 1024, 256, 2) contiguous=True
;   offset  16: d_in[2] v_cache  shape=(4096, 16, 4, 128) dtype=bfloat16 strides=(16384, 1024, 256, 2) contiguous=True
;   offset  24: d_in[3] block_table  shape=(1, 4096) dtype=int32 strides=(16384, 4) contiguous=True
;   offset  32: d_in[4] ctx_lens  shape=(1,) dtype=int32 strides=(4,) contiguous=True
"""

NT = ""
if len(sys.argv) > 2 and sys.argv[2] == "nt":
    NT = " nt"

out = []
def e(s=""):
    out.append(s)

V_KOFF = 1
V_VOFF = 2
V_TOK = 3
V_M = 4
V_L = 5
V_MX = 6
V_T0 = 7
Q = 8
ACC = 24
S = 56
P = 64
T = 68
V_AL = 100
V_MN = 101
V_T1 = 102
V_T2 = 103
V_LANE = 104
V_H = 105
V_G = 106
V_NEGM = 107
KB = [112, 176]
VB = [144, 208]
NV1 = 240

S_CSC = 51
S_CTX = 50
S_SELLO = 52
S_SELHI = 53
S_REM = [54, 55, 56, 57]
S_OFFA = [58, 60, 62, 64]
S_OFFB = [59, 61, 63, 65]
S_TMP = 66
S_TMP2 = 67
S_W = 3
S_KVH = 44
S_SPLIT = 45

LDS_HS = 528
LDS_WS = 8 * LDS_HS
LDS_ML = 8 * LDS_WS
LDS_BYTES = LDS_ML + 512

WS_ML = 1 << 20

def vr(a, n):
    return f"v[{a}:{a+n-1}]"

def load_k(i, kb):
    for u in range(2):
        so = S_OFFA[i] if u == 0 else S_OFFB[i]
        for j in range(4):
            e(f"    buffer_load_dwordx4 {vr(kb + (u*4+j)*4, 4)}, v{V_KOFF}, s[20:23], s{so} offen offset:{j*64}{NT}")

def load_v(i, vb):
    for u in range(2):
        so = S_OFFA[i] if u == 0 else S_OFFB[i]
        for r in range(4):
            e(f"    buffer_load_dwordx4 {vr(vb + (u*4+r)*4, 4)}, v{V_VOFF}, s[24:27], s{so} offen offset:{r*1024}{NT}")

def tile(i):
    kb = KB[i & 1]
    vb = VB[i & 1]
    nxt = i + 2 if i + 2 < 4 else None
    wK = [24, 24, 24, 8][i]
    wV = [24, 24, 16, 0][i]
    e(f"; ---------------- tile {i} ----------------")
    e(f"    s_cmp_lt_i32 s{S_REM[i]}, 1")
    e(f"    s_cbranch_scc1 L_epi")
    e(f"    s_waitcnt vmcnt({wK})")
    for j in range(4):
        for u in range(2):
            c = "0" if j == 0 else vr(S + u*4, 4)
            e(f"    v_mfma_f32_16x16x32_bf16 {vr(S+u*4,4)}, {vr(kb+(u*4+j)*4,4)}, {vr(Q+j*4,4)}, {c}")
    if nxt is not None:
        load_k(nxt, kb)
    e(f"    s_waitcnt vmcnt({wV})")
    for jj in range(4):
        for m in range(4):
            x = vb + (2*m)*4 + jj
            y = vb + (2*m+1)*4 + jj
            e(f"    v_perm_b32 v{T + (2*jj)*4 + m}, v{y}, v{x}, s{S_SELLO}")
            e(f"    v_perm_b32 v{T + (2*jj+1)*4 + m}, v{y}, v{x}, s{S_SELHI}")
    if nxt is not None:
        load_v(nxt, vb)
    e(f"    s_cmp_ge_i32 s{S_REM[i]}, 32")
    e(f"    s_cbranch_scc1 L_nomask{i}")
    e(f"    v_mov_b32 v{V_T1}, 0xff800000")
    for u in range(2):
        for r in range(4):
            e(f"    s_sub_i32 s{S_TMP}, s{S_REM[i]}, {u*16 + r}")
            e(f"    v_cmp_gt_i32 vcc, s{S_TMP}, v{V_TOK}")
            e(f"    s_nop 1")
            e(f"    v_cndmask_b32 v{S+u*4+r}, v{V_T1}, v{S+u*4+r}, vcc")
    e(f"L_nomask{i}:")
    e(f"    v_max3_f32 v{V_MX}, v{S}, v{S+1}, v{S+2}")
    e(f"    v_max3_f32 v{V_MX}, v{V_MX}, v{S+3}, v{S+4}")
    e(f"    v_max3_f32 v{V_MX}, v{V_MX}, v{S+5}, v{S+6}")
    e(f"    v_max_f32 v{V_MX}, v{V_MX}, v{S+7}")
    e(f"    v_mov_b32 v{V_T0}, v{V_MX}")
    e(f"    s_nop 1")
    e(f"    v_permlane16_swap_b32 v{V_MX}, v{V_T0}")
    e(f"    v_max_f32 v{V_MX}, v{V_MX}, v{V_T0}")
    e(f"    v_mov_b32 v{V_T0}, v{V_MX}")
    e(f"    s_nop 1")
    e(f"    v_permlane32_swap_b32 v{V_MX}, v{V_T0}")
    e(f"    v_max_f32 v{V_MX}, v{V_MX}, v{V_T0}")
    e(f"    v_mul_f32 v{V_MX}, s{S_CSC}, v{V_MX}")
    e(f"    v_max_f32 v{V_MN}, v{V_M}, v{V_MX}")
    e(f"    v_sub_f32 v{V_AL}, v{V_M}, v{V_MN}")
    e(f"    v_exp_f32 v{V_AL}, v{V_AL}")
    e(f"    v_mov_b32 v{V_M}, v{V_MN}")
    for k in range(8):
        e(f"    v_fma_f32 v{S+k}, v{S+k}, s{S_CSC}, -v{V_MN}")
    for k in range(8):
        e(f"    v_exp_f32 v{S+k}, v{S+k}")
    for k in range(32):
        e(f"    v_mul_f32 v{ACC+k}, v{V_AL}, v{ACC+k}")
    e(f"    v_mul_f32 v{V_L}, v{V_AL}, v{V_L}")
    e(f"    v_add_f32 v{V_T0}, v{S}, v{S+1}")
    e(f"    v_add_f32 v{V_T1}, v{S+2}, v{S+3}")
    e(f"    v_add_f32 v{V_T2}, v{S+4}, v{S+5}")
    e(f"    v_add_f32 v{V_MX}, v{S+6}, v{S+7}")
    for k in range(4):
        e(f"    v_cvt_pk_bf16_f32 v{P+k}, v{S+2*k}, v{S+2*k+1}")
    e(f"    v_add_f32 v{V_T0}, v{V_T0}, v{V_T1}")
    e(f"    v_add_f32 v{V_T2}, v{V_T2}, v{V_MX}")
    e(f"    v_add_f32 v{V_T0}, v{V_T0}, v{V_T2}")
    e(f"    v_add_f32 v{V_L}, v{V_L}, v{V_T0}")
    for j in range(8):
        e(f"    v_mfma_f32_16x16x32_bf16 {vr(ACC+j*4,4)}, {vr(T+j*4,4)}, {vr(P,4)}, {vr(ACC+j*4,4)}")

def kernel1():
    e(".p2align 8")
    e(".globl attn_part_kernel")
    e(".type attn_part_kernel,@function")
    e("attn_part_kernel:")
    e("    s_cmp_ge_u32 s2, 256")
    e("    s_cbranch_scc1 L_end1")
    e("    s_load_dwordx16 s[4:19], s[0:1], 0")
    e(f"    v_lshrrev_b32 v{V_T0}, 6, v0")
    e(f"    v_and_b32 v{V_LANE}, 63, v0")
    e(f"    v_readfirstlane_b32 s{S_W}, v{V_T0}")
    e(f"    s_and_b32 s{S_KVH}, s2, 3")
    e(f"    s_lshr_b32 s{S_SPLIT}, s2, 2")
    e(f"    v_and_b32 v{V_H}, 15, v{V_LANE}")
    e(f"    v_lshrrev_b32 v{V_G}, 4, v{V_LANE}")
    e(f"    s_lshl_b32 s46, s{S_W}, 6")
    e(f"    s_add_u32 s46, s46, s{S_SPLIT}")
    e(f"    s_lshl_b32 s47, s46, 3")
    e(f"    s_lshl_b32 s{S_TMP}, s{S_KVH}, 8")
    e(f"    v_lshlrev_b32 v{V_KOFF}, 10, v{V_H}")
    e(f"    v_lshl_add_u32 v{V_KOFF}, v{V_G}, 4, v{V_KOFF}")
    e(f"    v_add_u32 v{V_KOFF}, s{S_TMP}, v{V_KOFF}")
    e(f"    v_lshlrev_b32 v{V_VOFF}, 12, v{V_G}")
    e(f"    v_lshl_add_u32 v{V_VOFF}, v{V_H}, 4, v{V_VOFF}")
    e(f"    v_add_u32 v{V_VOFF}, s{S_TMP}, v{V_VOFF}")
    e(f"    v_lshlrev_b32 v{V_TOK}, 2, v{V_G}")
    e(f"    s_lshl_b32 s{S_TMP2}, s{S_KVH}, 11")
    e(f"    v_lshlrev_b32 v{V_T1}, 8, v{V_H}")
    e(f"    v_lshl_add_u32 v{V_T1}, v{V_G}, 4, v{V_T1}")
    e(f"    v_add_u32 v{V_T1}, s{S_TMP2}, v{V_T1}")
    e(f"    v_mov_b32 v{V_T2}, 0x40000000")
    e(f"    v_cmp_gt_u32 vcc, 8, v{V_H}")
    e(f"    s_nop 1")
    e(f"    v_cndmask_b32 v{V_T1}, v{V_T2}, v{V_T1}, vcc")
    e("    s_waitcnt lgkmcnt(0)")
    e("    s_add_u32 s48, s10, s47")
    e("    s_addc_u32 s49, s11, 0")
    e("    s_load_dwordx2 s[36:37], s[48:49], 0")
    e("    s_load_dwordx2 s[38:39], s[48:49], 4096")
    e("    s_load_dwordx2 s[40:41], s[48:49], 8192")
    e("    s_load_dwordx2 s[42:43], s[48:49], 12288")
    e(f"    s_load_dword s{S_CTX}, s[12:13], 0")
    for (d, p, n) in ((20, 6, 0x4000000), (24, 8, 0x4000000), (28, 4, 8192), (32, 18, 0x200000)):
        e(f"    s_mov_b32 s{d}, s{p}")
        e(f"    s_and_b32 s{d+1}, s{p+1}, 0xffff")
        e(f"    s_mov_b32 s{d+2}, {hex(n)}")
        e(f"    s_mov_b32 s{d+3}, 0x00020000")
    for j in range(4):
        e(f"    buffer_load_dwordx4 {vr(Q+j*4,4)}, v{V_T1}, s[28:31], 0 offen offset:{j*64}")
    e(f"    s_mov_b32 s{S_SELLO}, 0x05040100")
    e(f"    s_mov_b32 s{S_SELHI}, 0x07060302")
    e(f"    v_mov_b32 v{V_M}, 0xf149f2ca")
    e(f"    v_mov_b32 v{V_L}, 0")
    for k in range(32):
        e(f"    v_mov_b32 v{ACC+k}, 0")
    e("    s_waitcnt lgkmcnt(0)")
    e(f"    s_cmp_lt_i32 s{S_CTX}, 1")
    e(f"    s_cselect_b32 s{S_CSC}, 0, 0x3e0293ee")
    e(f"    s_cselect_b32 s{S_CTX}, 0x10000, s{S_CTX}")
    e(f"    s_min_i32 s{S_CTX}, s{S_CTX}, 0x10000")
    e(f"    s_lshl_b32 s{S_TMP}, s46, 5")
    e(f"    s_sub_i32 s{S_REM[0]}, s{S_CTX}, s{S_TMP}")
    for i in range(1, 4):
        e(f"    s_sub_i32 s{S_REM[i]}, s{S_REM[i-1]}, 0x4000")
    for i in range(4):
        e(f"    s_lshl_b32 s{S_OFFA[i]}, s{36+2*i}, 14")
        e(f"    s_lshl_b32 s{S_OFFB[i]}, s{37+2*i}, 14")
        e(f"    s_cmp_gt_i32 s{S_REM[i]}, 0")
        e(f"    s_cselect_b32 s{S_OFFA[i]}, s{S_OFFA[i]}, 0x80000000")
        e(f"    s_cselect_b32 s{S_OFFB[i]}, s{S_OFFB[i]}, 0x80000000")
        if i < 2:
            load_k(i, KB[i])
            load_v(i, VB[i])
    for i in range(4):
        tile(i)
    e("L_epi:")
    e(f"    v_mov_b32 v{V_T0}, v{V_L}")
    e(f"    s_nop 1")
    e(f"    v_permlane16_swap_b32 v{V_L}, v{V_T0}")
    e(f"    v_add_f32 v{V_L}, v{V_L}, v{V_T0}")
    e(f"    v_mov_b32 v{V_T0}, v{V_L}")
    e(f"    s_nop 1")
    e(f"    v_permlane32_swap_b32 v{V_L}, v{V_T0}")
    e(f"    v_add_f32 v{V_L}, v{V_L}, v{V_T0}")
    e(f"    s_mul_i32 s{S_TMP}, s{S_W}, {LDS_WS}")
    e(f"    v_mul_u32_u24 v{V_T1}, {LDS_HS}, v{V_H}")
    e(f"    v_lshl_add_u32 v{V_T1}, v{V_G}, 7, v{V_T1}")
    e(f"    v_add_u32 v{V_T1}, s{S_TMP}, v{V_T1}")
    e(f"    s_lshl_b32 s{S_TMP}, s{S_W}, 6")
    e(f"    s_add_u32 s{S_TMP}, s{S_TMP}, {LDS_ML}")
    e(f"    v_lshlrev_b32 v{V_T2}, 3, v{V_H}")
    e(f"    v_add_u32 v{V_T2}, s{S_TMP}, v{V_T2}")
    e(f"    s_nop 4")
    e(f"    s_mov_b32 s68, 0x00ff00ff")
    e(f"    s_mov_b32 s69, 0x00ff00ff")
    e(f"    s_mov_b64 exec, s[68:69]")
    for j in range(8):
        e(f"    ds_write_b128 v{V_T1}, {vr(ACC+j*4,4)} offset:{j*16}")
    e(f"    s_mov_b64 exec, 0xff")
    e(f"    ds_write_b64 v{V_T2}, v[{V_M}:{V_L}]")
    e(f"    s_mov_b64 exec, -1")
    e(f"    s_waitcnt lgkmcnt(0)")
    e(f"    s_barrier")
    e(f"    v_and_b32 v{V_T0}, 3, v{V_LANE}")
    e(f"    v_bfe_u32 v{V_T1}, v{V_LANE}, 2, 2")
    e(f"    v_lshlrev_b32 v{V_T0}, 5, v{V_T0}")
    e(f"    v_lshl_add_u32 v{V_T0}, v{V_T1}, 2, v{V_T0}")
    e(f"    v_lshl_add_u32 v{V_T0}, v{V_G}, 7, v{V_T0}")
    e(f"    s_mul_i32 s{S_TMP}, s{S_W}, {LDS_HS}")
    e(f"    v_add_u32 v{V_T0}, s{S_TMP}, v{V_T0}")
    e(f"    s_lshl_b32 s{S_TMP}, s{S_W}, 3")
    e(f"    s_add_u32 s{S_TMP}, s{S_TMP}, {LDS_ML}")
    e(f"    v_mov_b32 v{V_T1}, s{S_TMP}")
    ML = T
    OO = T + 16
    for w in range(8):
        e(f"    ds_read_b64 v[{ML+2*w}:{ML+2*w+1}], v{V_T1} offset:{w*64}")
    for w in range(8):
        e(f"    v_add_u32 v{S+w}, {w*LDS_WS}, v{V_T0}")
    for w in range(8):
        e(f"    ds_read2_b32 v[{OO+2*w}:{OO+2*w+1}], v{S+w} offset0:0 offset1:4")
    e(f"    s_waitcnt lgkmcnt(8)")
    e(f"    v_max3_f32 v{V_MX}, v{ML}, v{ML+2}, v{ML+4}")
    e(f"    v_max3_f32 v{V_MX}, v{V_MX}, v{ML+6}, v{ML+8}")
    e(f"    v_max3_f32 v{V_MX}, v{V_MX}, v{ML+10}, v{ML+12}")
    e(f"    v_max_f32 v{V_MX}, v{V_MX}, v{ML+14}")
    for w in range(8):
        e(f"    v_sub_f32 v{ML+2*w}, v{ML+2*w}, v{V_MX}")
    for w in range(8):
        e(f"    v_exp_f32 v{ML+2*w}, v{ML+2*w}")
    e(f"    s_waitcnt lgkmcnt(0)")
    A0, A1, AL = ACC, ACC+1, ACC+3
    e(f"    v_mul_f32 v{AL}, v{ML}, v{ML+1}")
    e(f"    v_mul_f32 v{A0}, v{ML}, v{OO}")
    e(f"    v_mul_f32 v{A1}, v{ML}, v{OO+1}")
    for w in range(1, 8):
        e(f"    v_fmac_f32 v{AL}, v{ML+2*w}, v{ML+2*w+1}")
        e(f"    v_fmac_f32 v{A0}, v{ML+2*w}, v{OO+2*w}")
        e(f"    v_fmac_f32 v{A1}, v{ML+2*w}, v{OO+2*w+1}")
    e(f"    v_mov_b32 v{ACC+2}, v{V_MX}")
    e(f"    s_lshl_b32 s{S_TMP}, s{S_KVH}, 3")
    e(f"    s_add_u32 s{S_TMP}, s{S_TMP}, s{S_W}")
    e(f"    s_lshl_b32 s{S_TMP}, s{S_TMP}, 6")
    e(f"    s_add_u32 s{S_TMP}, s{S_TMP}, s{S_SPLIT}")
    e(f"    s_lshl_b32 s{S_TMP2}, s{S_TMP}, 9")
    e(f"    v_lshlrev_b32 v{V_T0}, 3, v{V_LANE}")
    e(f"    buffer_store_dwordx2 v[{A0}:{A1}], v{V_T0}, s[32:35], s{S_TMP2} offen")
    e(f"    s_lshl_b32 s{S_TMP}, s{S_TMP}, 3")
    e(f"    s_add_u32 s{S_TMP}, s{S_TMP}, {WS_ML}")
    e(f"    s_mov_b64 exec, 1")
    e(f"    buffer_store_dwordx2 v[{ACC+2}:{ACC+3}], v{V_T0}, s[32:35], s{S_TMP} offen")
    e("L_end1:")
    e("    s_endpgm")

def kernel2():
    e(".p2align 8")
    e(".globl attn_comb_kernel")
    e(".type attn_comb_kernel,@function")
    e("attn_comb_kernel:")
    e("    s_cmp_ge_u32 s2, 128")
    e("    s_cbranch_scc1 L_end2")
    e("    s_load_dwordx2 s[4:5], s[0:1], 40")
    e("    s_load_dwordx2 s[6:7], s[0:1], 56")
    e("    s_lshr_b32 s8, s2, 2")
    e("    s_and_b32 s9, s2, 3")
    e("    v_lshrrev_b32 v1, 3, v0")
    e("    v_and_b32 v2, 7, v0")
    e("    v_lshlrev_b32 v3, 12, v1")
    e("    v_lshl_add_u32 v3, v2, 4, v3")
    e("    s_lshl_b32 s10, s8, 15")
    e("    s_lshl_b32 s11, s9, 7")
    e("    s_add_u32 s10, s10, s11")
    e("    v_lshlrev_b32 v4, 6, v1")
    e("    s_lshl_b32 s11, s8, 9")
    e(f"    s_add_u32 s11, s11, {WS_ML}")
    e("    s_waitcnt lgkmcnt(0)")
    for (d, p, n) in ((12, 6, 0x200000), (16, 4, 8192)):
        e(f"    s_mov_b32 s{d}, s{p}")
        e(f"    s_and_b32 s{d+1}, s{p+1}, 0xffff")
        e(f"    s_mov_b32 s{d+2}, {hex(n)}")
        e(f"    s_mov_b32 s{d+3}, 0x00020000")
    ML = 8
    OO = 24
    for k in range(4):
        e(f"    buffer_load_dwordx4 {vr(ML+4*k,4)}, v4, s[12:15], s11 offen offset:{k*16}")
    for i in range(8):
        e(f"    buffer_load_dwordx4 {vr(OO+4*i,4)}, v3, s[12:15], s10 offen offset:{i*512}")
    e("    s_waitcnt vmcnt(8)")
    e(f"    v_max3_f32 v5, v{ML}, v{ML+2}, v{ML+4}")
    e(f"    v_max3_f32 v5, v5, v{ML+6}, v{ML+8}")
    e(f"    v_max3_f32 v5, v5, v{ML+10}, v{ML+12}")
    e(f"    v_max_f32 v5, v5, v{ML+14}")
    e("    s_nop 1")
    e("    v_max_f32_dpp v5, v5, v5 row_ror:8 row_mask:0xf bank_mask:0xf")
    e("    v_mov_b32 v6, v5")
    e("    s_nop 1")
    e("    v_permlane16_swap_b32 v5, v6")
    e("    v_max_f32 v5, v5, v6")
    e("    v_mov_b32 v6, v5")
    e("    s_nop 1")
    e("    v_permlane32_swap_b32 v5, v6")
    e("    v_max_f32 v5, v5, v6")
    for i in range(8):
        e(f"    v_sub_f32 v{ML+2*i}, v{ML+2*i}, v5")
    for i in range(8):
        e(f"    v_exp_f32 v{ML+2*i}, v{ML+2*i}")
    R = 56
    e("    s_nop 0")
    e(f"    v_mul_f32 v{R+4}, v{ML}, v{ML+1}")
    for i in range(1, 8):
        e(f"    v_fmac_f32 v{R+4}, v{ML+2*i}, v{ML+2*i+1}")
    for i in range(8):
        e(f"    s_waitcnt vmcnt({7-i})")
        for k in range(4):
            if i == 0:
                e(f"    v_mul_f32 v{R+k}, v{ML}, v{OO+k}")
            else:
                e(f"    v_fmac_f32 v{R+k}, v{ML+2*i}, v{OO+4*i+k}")
    e("    s_nop 1")
    for k in range(5):
        e(f"    v_add_f32_dpp v{R+k}, v{R+k}, v{R+k} row_ror:8 row_mask:0xf bank_mask:0xf")
    for k in range(5):
        e(f"    v_mov_b32 v{64+k}, v{R+k}")
    e("    s_nop 1")
    for k in range(5):
        e(f"    v_permlane16_swap_b32 v{R+k}, v{64+k}")
    for k in range(5):
        e(f"    v_add_f32 v{R+k}, v{R+k}, v{64+k}")
    for k in range(5):
        e(f"    v_mov_b32 v{64+k}, v{R+k}")
    e("    s_nop 1")
    for k in range(5):
        e(f"    v_permlane32_swap_b32 v{R+k}, v{64+k}")
    for k in range(5):
        e(f"    v_add_f32 v{R+k}, v{R+k}, v{64+k}")
    e(f"    v_rcp_f32 v{R+4}, v{R+4}")
    e("    s_nop 0")
    for k in range(4):
        e(f"    v_mul_f32 v{R+k}, v{R+k}, v{R+4}")
    e(f"    v_cvt_pk_bf16_f32 v{R}, v{R}, v{R+1}")
    e(f"    v_cvt_pk_bf16_f32 v{R+1}, v{R+2}, v{R+3}")
    e("    s_lshl_b32 s10, s8, 8")
    e("    s_lshl_b32 s11, s9, 6")
    e("    s_add_u32 s10, s10, s11")
    e("    v_lshlrev_b32 v3, 3, v2")
    e("    s_mov_b64 exec, 0xff")
    e(f"    buffer_store_dwordx2 v[{R}:{R+1}], v3, s[16:19], s10 offen")
    e("L_end2:")
    e("    s_endpgm")

def desc(name, nv, ns):
    e(".p2align 6")
    e(f".amdhsa_kernel {name}")
    e(f"  .amdhsa_next_free_vgpr {nv}")
    e(f"  .amdhsa_next_free_sgpr {ns}")
    e(f"  .amdhsa_accum_offset {(nv+3)//4*4}")
    e("  .amdhsa_group_segment_fixed_size 0")
    e("  .amdhsa_kernarg_size 64")
    e("  .amdhsa_user_sgpr_count 2")
    e("  .amdhsa_user_sgpr_kernarg_segment_ptr 1")
    e("  .amdhsa_system_sgpr_workgroup_id_x 1")
    e(".end_amdhsa_kernel")

out.append(HEADER.rstrip("\n"))
e(f"; @launch kernel=attn_part_kernel grid=(256,1,1) block=(512,1,1) lds={LDS_BYTES}")
e(f"; @launch kernel=attn_comb_kernel grid=(128,1,1) block=(64,1,1) lds=0")
e('.amdgcn_target "amdgcn-amd-amdhsa--gfx950"')
e(".text")
kernel1()
kernel2()
e('.section .rodata,"a"')
desc("attn_part_kernel", NV1, 80)
desc("attn_comb_kernel", 72, 32)

open(sys.argv[1], "w").write("\n".join(out) + "\n")
```

```python
import sys

NAME = "standalone__paged_block_table_kv_radixattention__decode"

HEADER = """; Kernarg layout for this problem (64 bytes, ptrs only, base s[0:1]):
;   offset   0: d_in[0] q  shape=(1, 32, 128) dtype=bfloat16 strides=(8192, 256, 2) contiguous=True
;   offset   8: d_in[1] k_cache  shape=(4096, 16, 4, 128) dtype=bfloat16 strides=(16384, 1024, 256, 2) contiguous=True
;   offset  16: d_in[2] v_cache  shape=(4096, 16, 4, 128) dtype=bfloat16 strides=(16384, 1024, 256, 2) contiguous=True
;   offset  24: d_in[3] block_table  shape=(1, 4096) dtype=int32 strides=(16384, 4) contiguous=True
;   offset  32: d_in[4] ctx_lens  shape=(1,) dtype=int32 strides=(4,) contiguous=True
"""

NT = ""
if "nt" in sys.argv[2:]:
    NT = " nt"

out = []
def e(s=""):
    out.append(s)
INSTR = "instr" in sys.argv
_stamp = [0]
def stamp():
    if not INSTR: return
    k = _stamp[0]; _stamp[0] += 1
    e(f"    s_memrealtime s[70:71]")
    e(f"    s_waitcnt lgkmcnt(0)")
    e(f"    s_mov_b32 s{80+k}, s70")
def stamp_at(k):
    if not INSTR: return
    e(f"    s_memrealtime s[70:71]")
    e(f"    s_waitcnt lgkmcnt(0)")
    e(f"    s_mov_b32 s{80+k}, s70")
def dump_stamps():
    if not INSTR: return
    if "dbg" in sys.argv:
        e(f"    s_mov_b64 exec, 1")
        e(f"    s_not_b32 s80, s80")
        e(f"    s_lshl_b32 s70, s{S_KVH}, 2")
        e(f"    v_mov_b32 v{V_T0}, s70")
        e(f"    v_mov_b32 v{V_T1}, s92")
        e(f"    global_atomic_umax v{V_T0}, v{V_T1}, s[16:17]")
        e(f"    v_mov_b32 v{V_T2}, 16")
        e(f"    v_mov_b32 v{V_MX}, s80")
        e(f"    global_atomic_umax v{V_T2}, v{V_MX}, s[16:17]")
        e(f"    v_mov_b32 v{V_AL}, 20")
        e(f"    v_mov_b32 v{V_MN}, s82")
        e(f"    global_atomic_umax v{V_AL}, v{V_MN}, s[16:17]")
        e(f"    v_mov_b32 v{V_H}, 24")
        e(f"    s_not_b32 s83, s83")
        e(f"    v_mov_b32 v{V_G}, s83")
        e(f"    global_atomic_umax v{V_H}, v{V_G}, s[16:17]")
        return
    e(f"    s_mov_b64 exec, 1")
    e(f"    s_lshl_b32 s70, s2, 3")
    e(f"    s_add_u32 s70, s70, s{S_W}")
    e(f"    s_lshl_b32 s70, s70, 6")
    e(f"    s_add_u32 s70, s70, 0x8000000")
    e(f"    v_mov_b32 v{V_T0}, 0")
    for k in range(16):
        e(f"    v_mov_b32 v{V_T1}, s{80+k}")
        e(f"    buffer_store_dword v{V_T1}, v{V_T0}, s[32:35], s70 offen offset:{k*4}")
        e(f"    s_nop 1")

V_KOFF = 1
V_VOFF = 2
V_TOK = 3
V_M = 4
V_L = 5
V_MX = 6
V_T0 = 7
Q = 8
ACC = 24
S = 56
P = 64
T = 68
V_AL = 100
V_MN = 101
V_T1 = 102
V_T2 = 103
V_LANE = 104
V_H = 105
V_G = 106
V_NEGM = 107
KB = [112, 176]
VB = [144, 208]
NV1 = 240

S_CSC = 51
S_CTX = 50
S_SELLO = 52
S_SELHI = 53
S_REM = [54, 55, 56, 57]
S_OFFA = [58, 60, 62, 64]
S_OFFB = [59, 61, 63, 65]
S_TMP = 66
S_TMP2 = 67
S_W = 3
S_KVH = 44
S_SPLIT = 45

LDS_HS = 528
LDS_WS = 8 * LDS_HS
LDS_ML = 8 * LDS_WS
LDS_BYTES = LDS_ML + 512

WS_ML = 1 << 20

def vr(a, n):
    return f"v[{a}:{a+n-1}]"

def load_k(i, kb):
    for u in range(2):
        so = S_OFFA[i] if u == 0 else S_OFFB[i]
        for j in range(4):
            e(f"    buffer_load_dwordx4 {vr(kb + (u*4+j)*4, 4)}, v{V_KOFF}, s[20:23], s{so} offen offset:{j*64}{NT}")

def load_v(i, vb):
    for u in range(2):
        so = S_OFFA[i] if u == 0 else S_OFFB[i]
        for r in range(4):
            e(f"    buffer_load_dwordx4 {vr(vb + (u*4+r)*4, 4)}, v{V_VOFF}, s[24:27], s{so} offen offset:{r*1024}{NT}")

def tile(i):
    kb = KB[i & 1]
    vb = VB[i & 1]
    nxt = i + 2 if i + 2 < 4 else None
    wK = [24, 24, 24, 8][i]
    wV = [24, 24, 16, 0][i]
    e(f"; ---------------- tile {i} ----------------")
    e(f"    s_cmp_lt_i32 s{S_REM[i]}, 1")
    e(f"    s_cbranch_scc1 L_epi")
    e(f"    s_waitcnt vmcnt({wK})")
    stamp_at(3+2*i)
    for j in range(4):
        for u in range(2):
            c = "0" if j == 0 else vr(S + u*4, 4)
            e(f"    v_mfma_f32_16x16x32_bf16 {vr(S+u*4,4)}, {vr(kb+(u*4+j)*4,4)}, {vr(Q+j*4,4)}, {c}")
    if nxt is not None:
        load_k(nxt, kb)
    e(f"    s_waitcnt vmcnt({wV})")
    stamp_at(4+2*i)
    for jj in range(4):
        for m in range(4):
            x = vb + (2*m)*4 + jj
            y = vb + (2*m+1)*4 + jj
            e(f"    v_perm_b32 v{T + (2*jj)*4 + m}, v{y}, v{x}, s{S_SELLO}")
            e(f"    v_perm_b32 v{T + (2*jj+1)*4 + m}, v{y}, v{x}, s{S_SELHI}")
    if nxt is not None:
        load_v(nxt, vb)
    e(f"    s_cmp_ge_i32 s{S_REM[i]}, 32")
    e(f"    s_cbranch_scc1 L_nomask{i}")
    e(f"    v_mov_b32 v{V_T1}, 0xff800000")
    for u in range(2):
        for r in range(4):
            e(f"    s_sub_i32 s{S_TMP}, s{S_REM[i]}, {u*16 + r}")
            e(f"    v_cmp_gt_i32 vcc, s{S_TMP}, v{V_TOK}")
            e(f"    s_nop 1")
            e(f"    v_cndmask_b32 v{S+u*4+r}, v{V_T1}, v{S+u*4+r}, vcc")
    e(f"L_nomask{i}:")
    e(f"    v_max3_f32 v{V_MX}, v{S}, v{S+1}, v{S+2}")
    e(f"    v_max3_f32 v{V_MX}, v{V_MX}, v{S+3}, v{S+4}")
    e(f"    v_max3_f32 v{V_MX}, v{V_MX}, v{S+5}, v{S+6}")
    e(f"    v_max_f32 v{V_MX}, v{V_MX}, v{S+7}")
    e(f"    v_mov_b32 v{V_T0}, v{V_MX}")
    e(f"    s_nop 1")
    e(f"    v_permlane16_swap_b32 v{V_MX}, v{V_T0}")
    e(f"    v_max_f32 v{V_MX}, v{V_MX}, v{V_T0}")
    e(f"    v_mov_b32 v{V_T0}, v{V_MX}")
    e(f"    s_nop 1")
    e(f"    v_permlane32_swap_b32 v{V_MX}, v{V_T0}")
    e(f"    v_max_f32 v{V_MX}, v{V_MX}, v{V_T0}")
    e(f"    v_mul_f32 v{V_MX}, s{S_CSC}, v{V_MX}")
    e(f"    v_max_f32 v{V_MN}, v{V_M}, v{V_MX}")
    e(f"    v_sub_f32 v{V_AL}, v{V_M}, v{V_MN}")
    e(f"    v_exp_f32 v{V_AL}, v{V_AL}")
    e(f"    v_mov_b32 v{V_M}, v{V_MN}")
    for k in range(8):
        e(f"    v_fma_f32 v{S+k}, v{S+k}, s{S_CSC}, -v{V_MN}")
    for k in range(8):
        e(f"    v_exp_f32 v{S+k}, v{S+k}")
    for k in range(32):
        e(f"    v_mul_f32 v{ACC+k}, v{V_AL}, v{ACC+k}")
    e(f"    v_mul_f32 v{V_L}, v{V_AL}, v{V_L}")
    e(f"    v_add_f32 v{V_T0}, v{S}, v{S+1}")
    e(f"    v_add_f32 v{V_T1}, v{S+2}, v{S+3}")
    e(f"    v_add_f32 v{V_T2}, v{S+4}, v{S+5}")
    e(f"    v_add_f32 v{V_MX}, v{S+6}, v{S+7}")
    for k in range(4):
        e(f"    v_cvt_pk_bf16_f32 v{P+k}, v{S+2*k}, v{S+2*k+1}")
    e(f"    v_add_f32 v{V_T0}, v{V_T0}, v{V_T1}")
    e(f"    v_add_f32 v{V_T2}, v{V_T2}, v{V_MX}")
    e(f"    v_add_f32 v{V_T0}, v{V_T0}, v{V_T2}")
    e(f"    v_add_f32 v{V_L}, v{V_L}, v{V_T0}")
    for j in range(8):
        e(f"    v_mfma_f32_16x16x32_bf16 {vr(ACC+j*4,4)}, {vr(T+j*4,4)}, {vr(P,4)}, {vr(ACC+j*4,4)}")

def kernel1():
    e(".p2align 8")
    e(".globl attn_part_kernel")
    e(".type attn_part_kernel,@function")
    e("attn_part_kernel:")
    e("    s_cmp_ge_u32 s2, 256")
    e("    s_cbranch_scc1 L_end1")
    if INSTR:
        for k in range(16): e(f"    s_mov_b32 s{80+k}, 0")
    stamp_at(0)
    e("    s_load_dwordx16 s[4:19], s[0:1], 0")
    e(f"    v_lshrrev_b32 v{V_T0}, 6, v0")
    e(f"    v_and_b32 v{V_LANE}, 63, v0")
    e(f"    v_readfirstlane_b32 s{S_W}, v{V_T0}")
    if "map2" in sys.argv:
        e(f"    s_bfe_u32 s{S_KVH}, s2, 0x20003")
        e(f"    s_lshr_b32 s{S_SPLIT}, s2, 5")
        e(f"    s_lshl_b32 s{S_SPLIT}, s{S_SPLIT}, 3")
        e(f"    s_and_b32 s{S_TMP}, s2, 7")
        e(f"    s_or_b32 s{S_SPLIT}, s{S_SPLIT}, s{S_TMP}")
    else:
        e(f"    s_and_b32 s{S_KVH}, s2, 3")
        e(f"    s_lshr_b32 s{S_SPLIT}, s2, 2")
    e(f"    v_and_b32 v{V_H}, 15, v{V_LANE}")
    e(f"    v_lshrrev_b32 v{V_G}, 4, v{V_LANE}")
    e(f"    s_lshl_b32 s46, s{S_W}, 6")
    e(f"    s_add_u32 s46, s46, s{S_SPLIT}")
    e(f"    s_lshl_b32 s47, s46, 3")
    e(f"    s_lshl_b32 s{S_TMP}, s{S_KVH}, 8")
    e(f"    v_lshlrev_b32 v{V_KOFF}, 10, v{V_H}")
    e(f"    v_lshl_add_u32 v{V_KOFF}, v{V_G}, 4, v{V_KOFF}")
    e(f"    v_add_u32 v{V_KOFF}, s{S_TMP}, v{V_KOFF}")
    e(f"    v_lshlrev_b32 v{V_VOFF}, 12, v{V_G}")
    e(f"    v_lshl_add_u32 v{V_VOFF}, v{V_H}, 4, v{V_VOFF}")
    e(f"    v_add_u32 v{V_VOFF}, s{S_TMP}, v{V_VOFF}")
    e(f"    v_lshlrev_b32 v{V_TOK}, 2, v{V_G}")
    e(f"    s_lshl_b32 s{S_TMP2}, s{S_KVH}, 11")
    e(f"    v_lshlrev_b32 v{V_T1}, 8, v{V_H}")
    e(f"    v_lshl_add_u32 v{V_T1}, v{V_G}, 4, v{V_T1}")
    e(f"    v_add_u32 v{V_T1}, s{S_TMP2}, v{V_T1}")
    e(f"    v_mov_b32 v{V_T2}, 0x40000000")
    e(f"    v_cmp_gt_u32 vcc, 8, v{V_H}")
    e(f"    s_nop 1")
    e(f"    v_cndmask_b32 v{V_T1}, v{V_T2}, v{V_T1}, vcc")
    e("    s_waitcnt lgkmcnt(0)")
    stamp_at(1)
    e("    s_add_u32 s48, s10, s47")
    e("    s_addc_u32 s49, s11, 0")
    e("    s_load_dwordx2 s[36:37], s[48:49], 0")
    e("    s_load_dwordx2 s[38:39], s[48:49], 4096")
    e("    s_load_dwordx2 s[40:41], s[48:49], 8192")
    e("    s_load_dwordx2 s[42:43], s[48:49], 12288")
    e(f"    s_load_dword s{S_CTX}, s[12:13], 0")
    for (d, p, n) in ((20, 6, 0x4000000), (24, 8, 0x4000000), (28, 4, 8192), (32, 18, 0x10000000 if INSTR else 0x200000)):
        e(f"    s_mov_b32 s{d}, s{p}")
        e(f"    s_and_b32 s{d+1}, s{p+1}, 0xffff")
        e(f"    s_mov_b32 s{d+2}, {hex(n)}")
        e(f"    s_mov_b32 s{d+3}, 0x00020000")
    for j in range(4):
        e(f"    buffer_load_dwordx4 {vr(Q+j*4,4)}, v{V_T1}, s[28:31], 0 offen offset:{j*64}")
    e(f"    s_mov_b32 s{S_SELLO}, 0x05040100")
    e(f"    s_mov_b32 s{S_SELHI}, 0x07060302")
    e(f"    v_mov_b32 v{V_M}, 0xf149f2ca")
    e(f"    v_mov_b32 v{V_L}, 0")
    for k in range(32):
        e(f"    v_mov_b32 v{ACC+k}, 0")
    e("    s_waitcnt lgkmcnt(0)")
    stamp_at(2)
    e(f"    s_cmp_lt_i32 s{S_CTX}, 1")
    e(f"    s_cselect_b32 s{S_CSC}, 0, 0x3e0293ee")
    e(f"    s_cselect_b32 s{S_CTX}, 0x10000, s{S_CTX}")
    e(f"    s_min_i32 s{S_CTX}, s{S_CTX}, 0x10000")
    e(f"    s_lshl_b32 s{S_TMP}, s46, 5")
    e(f"    s_sub_i32 s{S_REM[0]}, s{S_CTX}, s{S_TMP}")
    for i in range(1, 4):
        e(f"    s_sub_i32 s{S_REM[i]}, s{S_REM[i-1]}, 0x4000")
    for i in range(4):
        e(f"    s_lshl_b32 s{S_OFFA[i]}, s{36+2*i}, 14")
        e(f"    s_lshl_b32 s{S_OFFB[i]}, s{37+2*i}, 14")
        e(f"    s_cmp_gt_i32 s{S_REM[i]}, 0")
        e(f"    s_cselect_b32 s{S_OFFA[i]}, s{S_OFFA[i]}, 0x80000000")
        e(f"    s_cselect_b32 s{S_OFFB[i]}, s{S_OFFB[i]}, 0x80000000")
        if i < 2:
            load_k(i, KB[i])
            load_v(i, VB[i])
    for i in range(4):
        tile(i)
    e("L_epi:")
    stamp_at(11)
    e(f"    v_mov_b32 v{V_T0}, v{V_L}")
    e(f"    s_nop 1")
    e(f"    v_permlane16_swap_b32 v{V_L}, v{V_T0}")
    e(f"    v_add_f32 v{V_L}, v{V_L}, v{V_T0}")
    e(f"    v_mov_b32 v{V_T0}, v{V_L}")
    e(f"    s_nop 1")
    e(f"    v_permlane32_swap_b32 v{V_L}, v{V_T0}")
    e(f"    v_add_f32 v{V_L}, v{V_L}, v{V_T0}")
    e(f"    s_mul_i32 s{S_TMP}, s{S_W}, {LDS_WS}")
    e(f"    v_mul_u32_u24 v{V_T1}, {LDS_HS}, v{V_H}")
    e(f"    v_lshl_add_u32 v{V_T1}, v{V_G}, 7, v{V_T1}")
    e(f"    v_add_u32 v{V_T1}, s{S_TMP}, v{V_T1}")
    e(f"    s_lshl_b32 s{S_TMP}, s{S_W}, 6")
    e(f"    s_add_u32 s{S_TMP}, s{S_TMP}, {LDS_ML}")
    e(f"    v_lshlrev_b32 v{V_T2}, 3, v{V_H}")
    e(f"    v_add_u32 v{V_T2}, s{S_TMP}, v{V_T2}")
    e(f"    s_nop 4")
    e(f"    s_mov_b32 s68, 0x00ff00ff")
    e(f"    s_mov_b32 s69, 0x00ff00ff")
    e(f"    s_mov_b64 exec, s[68:69]")
    for j in range(8):
        e(f"    ds_write_b128 v{V_T1}, {vr(ACC+j*4,4)} offset:{j*16}")
    e(f"    s_mov_b64 exec, 0xff")
    e(f"    ds_write_b64 v{V_T2}, v[{V_M}:{V_L}]")
    e(f"    s_mov_b64 exec, -1")
    e(f"    s_waitcnt lgkmcnt(0)")
    e(f"    s_barrier")
    stamp_at(12)
    e(f"    v_and_b32 v{V_T0}, 3, v{V_LANE}")
    e(f"    v_bfe_u32 v{V_T1}, v{V_LANE}, 2, 2")
    e(f"    v_lshlrev_b32 v{V_T0}, 5, v{V_T0}")
    e(f"    v_lshl_add_u32 v{V_T0}, v{V_T1}, 2, v{V_T0}")
    e(f"    v_lshl_add_u32 v{V_T0}, v{V_G}, 7, v{V_T0}")
    e(f"    s_mul_i32 s{S_TMP}, s{S_W}, {LDS_HS}")
    e(f"    v_add_u32 v{V_T0}, s{S_TMP}, v{V_T0}")
    e(f"    s_lshl_b32 s{S_TMP}, s{S_W}, 3")
    e(f"    s_add_u32 s{S_TMP}, s{S_TMP}, {LDS_ML}")
    e(f"    v_mov_b32 v{V_T1}, s{S_TMP}")
    ML = T
    OO = T + 16
    for w in range(8):
        e(f"    ds_read_b64 v[{ML+2*w}:{ML+2*w+1}], v{V_T1} offset:{w*64}")
    for w in range(8):
        e(f"    v_add_u32 v{S+w}, {w*LDS_WS}, v{V_T0}")
    for w in range(8):
        e(f"    ds_read2_b32 v[{OO+2*w}:{OO+2*w+1}], v{S+w} offset0:0 offset1:4")
    e(f"    s_waitcnt lgkmcnt(8)")
    e(f"    v_max3_f32 v{V_MX}, v{ML}, v{ML+2}, v{ML+4}")
    e(f"    v_max3_f32 v{V_MX}, v{V_MX}, v{ML+6}, v{ML+8}")
    e(f"    v_max3_f32 v{V_MX}, v{V_MX}, v{ML+10}, v{ML+12}")
    e(f"    v_max_f32 v{V_MX}, v{V_MX}, v{ML+14}")
    for w in range(8):
        e(f"    v_sub_f32 v{ML+2*w}, v{ML+2*w}, v{V_MX}")
    for w in range(8):
        e(f"    v_exp_f32 v{ML+2*w}, v{ML+2*w}")
    e(f"    s_waitcnt lgkmcnt(0)")
    A0, A1, AL = ACC, ACC+1, ACC+3
    e(f"    v_mul_f32 v{AL}, v{ML}, v{ML+1}")
    e(f"    v_mul_f32 v{A0}, v{ML}, v{OO}")
    e(f"    v_mul_f32 v{A1}, v{ML}, v{OO+1}")
    for w in range(1, 8):
        e(f"    v_fmac_f32 v{AL}, v{ML+2*w}, v{ML+2*w+1}")
        e(f"    v_fmac_f32 v{A0}, v{ML+2*w}, v{OO+2*w}")
        e(f"    v_fmac_f32 v{A1}, v{ML+2*w}, v{OO+2*w+1}")
    e(f"    v_mov_b32 v{ACC+2}, v{V_MX}")
    e(f"    s_lshl_b32 s{S_TMP}, s{S_KVH}, 3")
    e(f"    s_add_u32 s{S_TMP}, s{S_TMP}, s{S_W}")
    e(f"    s_lshl_b32 s{S_TMP}, s{S_TMP}, 6")
    e(f"    s_add_u32 s{S_TMP}, s{S_TMP}, s{S_SPLIT}")
    e(f"    s_lshl_b32 s{S_TMP2}, s{S_TMP}, 9")
    e(f"    v_lshlrev_b32 v{V_T0}, 3, v{V_LANE}")
    e(f"    buffer_store_dwordx2 v[{A0}:{A1}], v{V_T0}, s[32:35], s{S_TMP2} offen")
    e(f"    s_lshl_b32 s{S_TMP}, s{S_TMP}, 3")
    e(f"    s_add_u32 s{S_TMP}, s{S_TMP}, {WS_ML}")
    e(f"    s_mov_b64 exec, 1")
    e(f"    buffer_store_dwordx2 v[{ACC+2}:{ACC+3}], v{V_T0}, s[32:35], s{S_TMP} offen")
    stamp_at(13)
    e("    s_waitcnt vmcnt(0)")
    stamp_at(14)
    dump_stamps()
    e("L_end1:")
    e("    s_endpgm")

def kernel2():
    e(".p2align 8")
    e(".globl attn_comb_kernel")
    e(".type attn_comb_kernel,@function")
    e("attn_comb_kernel:")
    e("    s_cmp_ge_u32 s2, 128")
    e("    s_cbranch_scc1 L_end2")
    e("    s_load_dwordx2 s[4:5], s[0:1], 40")
    e("    s_load_dwordx2 s[6:7], s[0:1], 56")
    e("    s_lshr_b32 s8, s2, 2")
    e("    s_and_b32 s9, s2, 3")
    e("    v_lshrrev_b32 v1, 3, v0")
    e("    v_and_b32 v2, 7, v0")
    e("    v_lshlrev_b32 v3, 12, v1")
    e("    v_lshl_add_u32 v3, v2, 4, v3")
    e("    s_lshl_b32 s10, s8, 15")
    e("    s_lshl_b32 s11, s9, 7")
    e("    s_add_u32 s10, s10, s11")
    e("    v_lshlrev_b32 v4, 6, v1")
    e("    s_lshl_b32 s11, s8, 9")
    e(f"    s_add_u32 s11, s11, {WS_ML}")
    e("    s_waitcnt lgkmcnt(0)")
    for (d, p, n) in ((12, 6, 0x200000), (16, 4, 8192)):
        e(f"    s_mov_b32 s{d}, s{p}")
        e(f"    s_and_b32 s{d+1}, s{p+1}, 0xffff")
        e(f"    s_mov_b32 s{d+2}, {hex(n)}")
        e(f"    s_mov_b32 s{d+3}, 0x00020000")
    ML = 8
    OO = 24
    for k in range(4):
        e(f"    buffer_load_dwordx4 {vr(ML+4*k,4)}, v4, s[12:15], s11 offen offset:{k*16}")
    for i in range(8):
        e(f"    buffer_load_dwordx4 {vr(OO+4*i,4)}, v3, s[12:15], s10 offen offset:{i*512}")
    e("    s_waitcnt vmcnt(8)")
    e(f"    v_max3_f32 v5, v{ML}, v{ML+2}, v{ML+4}")
    e(f"    v_max3_f32 v5, v5, v{ML+6}, v{ML+8}")
    e(f"    v_max3_f32 v5, v5, v{ML+10}, v{ML+12}")
    e(f"    v_max_f32 v5, v5, v{ML+14}")
    e("    s_nop 1")
    e("    v_max_f32_dpp v5, v5, v5 row_ror:8 row_mask:0xf bank_mask:0xf")
    e("    v_mov_b32 v6, v5")
    e("    s_nop 1")
    e("    v_permlane16_swap_b32 v5, v6")
    e("    v_max_f32 v5, v5, v6")
    e("    v_mov_b32 v6, v5")
    e("    s_nop 1")
    e("    v_permlane32_swap_b32 v5, v6")
    e("    v_max_f32 v5, v5, v6")
    for i in range(8):
        e(f"    v_sub_f32 v{ML+2*i}, v{ML+2*i}, v5")
    for i in range(8):
        e(f"    v_exp_f32 v{ML+2*i}, v{ML+2*i}")
    R = 56
    e("    s_nop 0")
    e(f"    v_mul_f32 v{R+4}, v{ML}, v{ML+1}")
    for i in range(1, 8):
        e(f"    v_fmac_f32 v{R+4}, v{ML+2*i}, v{ML+2*i+1}")
    for i in range(8):
        e(f"    s_waitcnt vmcnt({7-i})")
        for k in range(4):
            if i == 0:
                e(f"    v_mul_f32 v{R+k}, v{ML}, v{OO+k}")
            else:
                e(f"    v_fmac_f32 v{R+k}, v{ML+2*i}, v{OO+4*i+k}")
    e("    s_nop 1")
    for k in range(5):
        e(f"    v_add_f32_dpp v{R+k}, v{R+k}, v{R+k} row_ror:8 row_mask:0xf bank_mask:0xf")
    for k in range(5):
        e(f"    v_mov_b32 v{64+k}, v{R+k}")
    e("    s_nop 1")
    for k in range(5):
        e(f"    v_permlane16_swap_b32 v{R+k}, v{64+k}")
    for k in range(5):
        e(f"    v_add_f32 v{R+k}, v{R+k}, v{64+k}")
    for k in range(5):
        e(f"    v_mov_b32 v{64+k}, v{R+k}")
    e("    s_nop 1")
    for k in range(5):
        e(f"    v_permlane32_swap_b32 v{R+k}, v{64+k}")
    for k in range(5):
        e(f"    v_add_f32 v{R+k}, v{R+k}, v{64+k}")
    e(f"    v_rcp_f32 v{R+4}, v{R+4}")
    e("    s_nop 0")
    for k in range(4):
        e(f"    v_mul_f32 v{R+k}, v{R+k}, v{R+4}")
    e(f"    v_cvt_pk_bf16_f32 v{R}, v{R}, v{R+1}")
    e(f"    v_cvt_pk_bf16_f32 v{R+1}, v{R+2}, v{R+3}")
    e("    s_lshl_b32 s10, s8, 8")
    e("    s_lshl_b32 s11, s9, 6")
    e("    s_add_u32 s10, s10, s11")
    e("    v_lshlrev_b32 v3, 3, v2")
    e("    s_mov_b64 exec, 0xff")
    e(f"    buffer_store_dwordx2 v[{R}:{R+1}], v3, s[16:19], s10 offen")
    e("L_end2:")
    e("    s_endpgm")

def desc(name, nv, ns):
    e(".p2align 6")
    e(f".amdhsa_kernel {name}")
    e(f"  .amdhsa_next_free_vgpr {nv}")
    e(f"  .amdhsa_next_free_sgpr {ns}")
    e(f"  .amdhsa_accum_offset {(nv+3)//4*4}")
    e("  .amdhsa_group_segment_fixed_size 0")
    e("  .amdhsa_kernarg_size 64")
    e("  .amdhsa_user_sgpr_count 2")
    e("  .amdhsa_user_sgpr_kernarg_segment_ptr 1")
    e("  .amdhsa_system_sgpr_workgroup_id_x 1")
    e(".end_amdhsa_kernel")

out.append(HEADER.rstrip("\n"))
e(f"; @launch kernel=attn_part_kernel grid=(256,1,1) block=(512,1,1) lds={LDS_BYTES}")
e(f"; @launch kernel=attn_comb_kernel grid=(128,1,1) block=(64,1,1) lds=0")
e('.amdgcn_target "amdgcn-amd-amdhsa--gfx950"')
e(".text")
kernel1()
kernel2()
e('.section .rodata,"a"')
desc("attn_part_kernel", NV1, 100)
desc("attn_comb_kernel", 72, 32)

open(sys.argv[1], "w").write("\n".join(out) + "\n")
```

```python
import sys

NAME = "standalone__paged_block_table_kv_radixattention__decode"

HEADER = """; Kernarg layout for this problem (64 bytes, ptrs only, base s[0:1]):
;   offset   0: d_in[0] q  shape=(1, 32, 128) dtype=bfloat16 strides=(8192, 256, 2) contiguous=True
;   offset   8: d_in[1] k_cache  shape=(4096, 16, 4, 128) dtype=bfloat16 strides=(16384, 1024, 256, 2) contiguous=True
;   offset  16: d_in[2] v_cache  shape=(4096, 16, 4, 128) dtype=bfloat16 strides=(16384, 1024, 256, 2) contiguous=True
;   offset  24: d_in[3] block_table  shape=(1, 4096) dtype=int32 strides=(16384, 4) contiguous=True
;   offset  32: d_in[4] ctx_lens  shape=(1,) dtype=int32 strides=(4,) contiguous=True
"""

NT = ""
if "nt" in sys.argv[2:]:
    NT = " nt"

out = []
def e(s=""):
    out.append(s)
INSTR = "instr" in sys.argv
_stamp = [0]
def stamp():
    if not INSTR: return
    k = _stamp[0]; _stamp[0] += 1
    e(f"    s_memrealtime s[70:71]")
    e(f"    s_waitcnt lgkmcnt(0)")
    e(f"    s_mov_b32 s{80+k}, s70")
def stamp_at(k):
    if not INSTR: return
    e(f"    s_memrealtime s[70:71]")
    e(f"    s_waitcnt lgkmcnt(0)")
    e(f"    s_mov_b32 s{80+k}, s70")
def dump_stamps():
    if not INSTR: return
    if "dbg" in sys.argv:
        e(f"    s_mov_b64 exec, 1")
        e(f"    s_not_b32 s80, s80")
        e(f"    s_lshl_b32 s70, s{S_KVH}, 2")
        e(f"    v_mov_b32 v{V_T0}, s70")
        e(f"    v_mov_b32 v{V_T1}, s92")
        e(f"    global_atomic_umax v{V_T0}, v{V_T1}, s[16:17]")
        e(f"    v_mov_b32 v{V_T2}, 16")
        e(f"    v_mov_b32 v{V_MX}, s80")
        e(f"    global_atomic_umax v{V_T2}, v{V_MX}, s[16:17]")
        e(f"    v_mov_b32 v{V_AL}, 20")
        e(f"    v_mov_b32 v{V_MN}, s82")
        e(f"    global_atomic_umax v{V_AL}, v{V_MN}, s[16:17]")
        e(f"    v_mov_b32 v{V_H}, 24")
        e(f"    s_not_b32 s83, s83")
        e(f"    v_mov_b32 v{V_G}, s83")
        e(f"    global_atomic_umax v{V_H}, v{V_G}, s[16:17]")
        return
    e(f"    s_mov_b64 exec, 1")
    e(f"    s_lshl_b32 s70, s2, 3")
    e(f"    s_add_u32 s70, s70, s{S_W}")
    e(f"    s_lshl_b32 s70, s70, 6")
    e(f"    s_add_u32 s70, s70, 0x8000000")
    e(f"    v_mov_b32 v{V_T0}, 0")
    for k in range(16):
        e(f"    v_mov_b32 v{V_T1}, s{80+k}")
        e(f"    buffer_store_dword v{V_T1}, v{V_T0}, s[32:35], s70 offen offset:{k*4}")
        e(f"    s_nop 1")

V_KOFF = 1
V_VOFF = 2
V_TOK = 3
V_M = 4
V_L = 5
V_MX = 6
V_T0 = 7
Q = 8
ACC = 24
S = 56
P = 64
T = 68
V_AL = 100
V_MN = 101
V_T1 = 102
V_T2 = 103
V_LANE = 104
V_H = 105
V_G = 106
V_NEGM = 107
KB = [112, 176]
VB = [144, 208]
NV1 = 240

S_CSC = 51
S_CTX = 50
S_SELLO = 52
S_SELHI = 53
S_REM = [54, 55, 56, 57]
S_OFFA = [58, 60, 62, 64]
S_OFFB = [59, 61, 63, 65]
S_TMP = 66
S_TMP2 = 67
S_W = 3
S_KVH = 44
S_SPLIT = 45

LDS_HS = 528
LDS_WS = 8 * LDS_HS
LDS_ML = 8 * LDS_WS
LDS_BYTES = LDS_ML + 512

WS_ML = 1 << 20

def vr(a, n):
    return f"v[{a}:{a+n-1}]"

def load_k(i, kb):
    for u in range(2):
        so = S_OFFA[i] if u == 0 else S_OFFB[i]
        for j in range(4):
            e(f"    buffer_load_dwordx4 {vr(kb + (u*4+j)*4, 4)}, v{V_KOFF}, s[20:23], s{so} offen offset:{j*64}{NT}")

def load_v(i, vb):
    for u in range(2):
        so = S_OFFA[i] if u == 0 else S_OFFB[i]
        for r in range(4):
            e(f"    buffer_load_dwordx4 {vr(vb + (u*4+r)*4, 4)}, v{V_VOFF}, s[24:27], s{so} offen offset:{r*1024}{NT}")

def tile(i):
    kb = KB[i & 1]
    vb = VB[i & 1]
    nxt = i + 2 if i + 2 < 4 else None
    wK = [24, 24, 24, 8][i]
    wV = [24, 24, 16, 0][i]
    e(f"; ---------------- tile {i} ----------------")
    e(f"    s_cmp_lt_i32 s{S_REM[i]}, 1")
    e(f"    s_cbranch_scc1 L_epi")
    e(f"    s_waitcnt vmcnt({wK})")
    stamp_at(3+2*i)
    for j in range(4):
        for u in range(2):
            c = "0" if j == 0 else vr(S + u*4, 4)
            e(f"    v_mfma_f32_16x16x32_bf16 {vr(S+u*4,4)}, {vr(kb+(u*4+j)*4,4)}, {vr(Q+j*4,4)}, {c}")
    if nxt is not None:
        load_k(nxt, kb)
    e(f"    s_waitcnt vmcnt({wV})")
    stamp_at(4+2*i)
    for jj in range(4):
        for m in range(4):
            x = vb + (2*m)*4 + jj
            y = vb + (2*m+1)*4 + jj
            e(f"    v_perm_b32 v{T + (2*jj)*4 + m}, v{y}, v{x}, s{S_SELLO}")
            e(f"    v_perm_b32 v{T + (2*jj+1)*4 + m}, v{y}, v{x}, s{S_SELHI}")
    if nxt is not None:
        load_v(nxt, vb)
    e(f"    s_cmp_ge_i32 s{S_REM[i]}, 32")
    e(f"    s_cbranch_scc1 L_nomask{i}")
    e(f"    v_mov_b32 v{V_T1}, 0xff800000")
    for u in range(2):
        for r in range(4):
            e(f"    s_sub_i32 s{S_TMP}, s{S_REM[i]}, {u*16 + r}")
            e(f"    v_cmp_gt_i32 vcc, s{S_TMP}, v{V_TOK}")
            e(f"    s_nop 1")
            e(f"    v_cndmask_b32 v{S+u*4+r}, v{V_T1}, v{S+u*4+r}, vcc")
    e(f"L_nomask{i}:")
    e(f"    v_max3_f32 v{V_MX}, v{S}, v{S+1}, v{S+2}")
    e(f"    v_max3_f32 v{V_MX}, v{V_MX}, v{S+3}, v{S+4}")
    e(f"    v_max3_f32 v{V_MX}, v{V_MX}, v{S+5}, v{S+6}")
    e(f"    v_max_f32 v{V_MX}, v{V_MX}, v{S+7}")
    e(f"    v_mov_b32 v{V_T0}, v{V_MX}")
    e(f"    s_nop 1")
    e(f"    v_permlane16_swap_b32 v{V_MX}, v{V_T0}")
    e(f"    v_max_f32 v{V_MX}, v{V_MX}, v{V_T0}")
    e(f"    v_mov_b32 v{V_T0}, v{V_MX}")
    e(f"    s_nop 1")
    e(f"    v_permlane32_swap_b32 v{V_MX}, v{V_T0}")
    e(f"    v_max_f32 v{V_MX}, v{V_MX}, v{V_T0}")
    e(f"    v_mul_f32 v{V_MX}, s{S_CSC}, v{V_MX}")
    e(f"    v_max_f32 v{V_MN}, v{V_M}, v{V_MX}")
    e(f"    v_sub_f32 v{V_AL}, v{V_M}, v{V_MN}")
    e(f"    v_exp_f32 v{V_AL}, v{V_AL}")
    e(f"    v_mov_b32 v{V_M}, v{V_MN}")
    for k in range(8):
        e(f"    v_fma_f32 v{S+k}, v{S+k}, s{S_CSC}, -v{V_MN}")
    for k in range(8):
        e(f"    v_exp_f32 v{S+k}, v{S+k}")
    for k in range(32):
        e(f"    v_mul_f32 v{ACC+k}, v{V_AL}, v{ACC+k}")
    e(f"    v_mul_f32 v{V_L}, v{V_AL}, v{V_L}")
    e(f"    v_add_f32 v{V_T0}, v{S}, v{S+1}")
    e(f"    v_add_f32 v{V_T1}, v{S+2}, v{S+3}")
    e(f"    v_add_f32 v{V_T2}, v{S+4}, v{S+5}")
    e(f"    v_add_f32 v{V_MX}, v{S+6}, v{S+7}")
    for k in range(4):
        e(f"    v_cvt_pk_bf16_f32 v{P+k}, v{S+2*k}, v{S+2*k+1}")
    e(f"    v_add_f32 v{V_T0}, v{V_T0}, v{V_T1}")
    e(f"    v_add_f32 v{V_T2}, v{V_T2}, v{V_MX}")
    e(f"    v_add_f32 v{V_T0}, v{V_T0}, v{V_T2}")
    e(f"    v_add_f32 v{V_L}, v{V_L}, v{V_T0}")
    for j in range(8):
        e(f"    v_mfma_f32_16x16x32_bf16 {vr(ACC+j*4,4)}, {vr(T+j*4,4)}, {vr(P,4)}, {vr(ACC+j*4,4)}")

def kernel1():
    e(".p2align 8")
    e(".globl attn_part_kernel")
    e(".type attn_part_kernel,@function")
    e("attn_part_kernel:")
    e("    s_cmp_ge_u32 s2, 256")
    e("    s_cbranch_scc1 L_end1")
    if INSTR:
        for k in range(16): e(f"    s_mov_b32 s{80+k}, 0")
    stamp_at(0)
    e("    s_load_dwordx16 s[4:19], s[0:1], 0")
    e(f"    v_lshrrev_b32 v{V_T0}, 6, v0")
    e(f"    v_and_b32 v{V_LANE}, 63, v0")
    e(f"    v_readfirstlane_b32 s{S_W}, v{V_T0}")
    if "map2" in sys.argv:
        e(f"    s_bfe_u32 s{S_KVH}, s2, 0x20003")
        e(f"    s_lshr_b32 s{S_SPLIT}, s2, 5")
        e(f"    s_lshl_b32 s{S_SPLIT}, s{S_SPLIT}, 3")
        e(f"    s_and_b32 s{S_TMP}, s2, 7")
        e(f"    s_or_b32 s{S_SPLIT}, s{S_SPLIT}, s{S_TMP}")
    else:
        e(f"    s_and_b32 s{S_KVH}, s2, 3")
        e(f"    s_lshr_b32 s{S_SPLIT}, s2, 2")
    e(f"    v_and_b32 v{V_H}, 15, v{V_LANE}")
    e(f"    v_lshrrev_b32 v{V_G}, 4, v{V_LANE}")
    e(f"    s_lshl_b32 s46, s{S_W}, 6")
    e(f"    s_add_u32 s46, s46, s{S_SPLIT}")
    e(f"    s_lshl_b32 s47, s46, 3")
    e(f"    s_lshl_b32 s{S_TMP}, s{S_KVH}, 8")
    e(f"    v_lshlrev_b32 v{V_KOFF}, 10, v{V_H}")
    e(f"    v_lshl_add_u32 v{V_KOFF}, v{V_G}, 4, v{V_KOFF}")
    e(f"    v_add_u32 v{V_KOFF}, s{S_TMP}, v{V_KOFF}")
    e(f"    v_lshlrev_b32 v{V_VOFF}, 12, v{V_G}")
    e(f"    v_lshl_add_u32 v{V_VOFF}, v{V_H}, 4, v{V_VOFF}")
    e(f"    v_add_u32 v{V_VOFF}, s{S_TMP}, v{V_VOFF}")
    e(f"    v_lshlrev_b32 v{V_TOK}, 2, v{V_G}")
    e(f"    s_lshl_b32 s{S_TMP2}, s{S_KVH}, 11")
    e(f"    v_lshlrev_b32 v{V_T1}, 8, v{V_H}")
    e(f"    v_lshl_add_u32 v{V_T1}, v{V_G}, 4, v{V_T1}")
    e(f"    v_add_u32 v{V_T1}, s{S_TMP2}, v{V_T1}")
    e(f"    v_mov_b32 v{V_T2}, 0x40000000")
    e(f"    v_cmp_gt_u32 vcc, 8, v{V_H}")
    e(f"    s_nop 1")
    e(f"    v_cndmask_b32 v{V_T1}, v{V_T2}, v{V_T1}, vcc")
    e("    s_waitcnt lgkmcnt(0)")
    stamp_at(1)
    e("    s_add_u32 s48, s10, s47")
    e("    s_addc_u32 s49, s11, 0")
    e("    s_load_dwordx2 s[36:37], s[48:49], 0")
    e("    s_load_dwordx2 s[38:39], s[48:49], 4096")
    e("    s_load_dwordx2 s[40:41], s[48:49], 8192")
    e("    s_load_dwordx2 s[42:43], s[48:49], 12288")
    e(f"    s_load_dword s{S_CTX}, s[12:13], 0")
    for (d, p, n) in ((20, 6, 0x4000000), (24, 8, 0x4000000), (28, 4, 8192), (32, 18, 0x10000000 if INSTR else 0x200000)):
        e(f"    s_mov_b32 s{d}, s{p}")
        e(f"    s_and_b32 s{d+1}, s{p+1}, 0xffff")
        e(f"    s_mov_b32 s{d+2}, {hex(n)}")
        e(f"    s_mov_b32 s{d+3}, 0x00020000")
    for j in range(4):
        e(f"    buffer_load_dwordx4 {vr(Q+j*4,4)}, v{V_T1}, s[28:31], 0 offen offset:{j*64}")
    e(f"    s_mov_b32 s{S_SELLO}, 0x05040100")
    e(f"    s_mov_b32 s{S_SELHI}, 0x07060302")
    e(f"    v_mov_b32 v{V_M}, 0xf149f2ca")
    e(f"    v_mov_b32 v{V_L}, 0")
    for k in range(32):
        e(f"    v_mov_b32 v{ACC+k}, 0")
    e("    s_waitcnt lgkmcnt(0)")
    stamp_at(2)
    e(f"    s_cmp_lt_i32 s{S_CTX}, 1")
    e(f"    s_cselect_b32 s{S_CSC}, 0, 0x3e0293ee")
    e(f"    s_cselect_b32 s{S_CTX}, 0x10000, s{S_CTX}")
    e(f"    s_min_i32 s{S_CTX}, s{S_CTX}, 0x10000")
    e(f"    s_lshl_b32 s{S_TMP}, s46, 5")
    e(f"    s_sub_i32 s{S_REM[0]}, s{S_CTX}, s{S_TMP}")
    for i in range(1, 4):
        e(f"    s_sub_i32 s{S_REM[i]}, s{S_REM[i-1]}, 0x4000")
    for i in range(4):
        e(f"    s_lshl_b32 s{S_OFFA[i]}, s{36+2*i}, 14")
        e(f"    s_lshl_b32 s{S_OFFB[i]}, s{37+2*i}, 14")
        e(f"    s_cmp_gt_i32 s{S_REM[i]}, 0")
        e(f"    s_cselect_b32 s{S_OFFA[i]}, s{S_OFFA[i]}, 0x80000000")
        e(f"    s_cselect_b32 s{S_OFFB[i]}, s{S_OFFB[i]}, 0x80000000")
        if i < 2:
            load_k(i, KB[i])
            load_v(i, VB[i])
    for i in range(4):
        tile(i)
    e("L_epi:")
    stamp_at(11)
    e(f"    v_mov_b32 v{V_T0}, v{V_L}")
    e(f"    s_nop 1")
    e(f"    v_permlane16_swap_b32 v{V_L}, v{V_T0}")
    e(f"    v_add_f32 v{V_L}, v{V_L}, v{V_T0}")
    e(f"    v_mov_b32 v{V_T0}, v{V_L}")
    e(f"    s_nop 1")
    e(f"    v_permlane32_swap_b32 v{V_L}, v{V_T0}")
    e(f"    v_add_f32 v{V_L}, v{V_L}, v{V_T0}")
    e(f"    s_mul_i32 s{S_TMP}, s{S_W}, {LDS_WS}")
    e(f"    v_mul_u32_u24 v{V_T1}, {LDS_HS}, v{V_H}")
    e(f"    v_lshl_add_u32 v{V_T1}, v{V_G}, 7, v{V_T1}")
    e(f"    v_add_u32 v{V_T1}, s{S_TMP}, v{V_T1}")
    e(f"    s_lshl_b32 s{S_TMP}, s{S_W}, 6")
    e(f"    s_add_u32 s{S_TMP}, s{S_TMP}, {LDS_ML}")
    e(f"    v_lshlrev_b32 v{V_T2}, 3, v{V_H}")
    e(f"    v_add_u32 v{V_T2}, s{S_TMP}, v{V_T2}")
    e(f"    s_nop 4")
    e(f"    s_mov_b32 s68, 0x00ff00ff")
    e(f"    s_mov_b32 s69, 0x00ff00ff")
    e(f"    s_mov_b64 exec, s[68:69]")
    for j in range(8):
        e(f"    ds_write_b128 v{V_T1}, {vr(ACC+j*4,4)} offset:{j*16}")
    e(f"    s_mov_b64 exec, 0xff")
    e(f"    ds_write_b64 v{V_T2}, v[{V_M}:{V_L}]")
    e(f"    s_mov_b64 exec, -1")
    e(f"    s_waitcnt lgkmcnt(0)")
    e(f"    s_barrier")
    stamp_at(12)
    e(f"    v_and_b32 v{V_T0}, 3, v{V_LANE}")
    e(f"    v_bfe_u32 v{V_T1}, v{V_LANE}, 2, 2")
    e(f"    v_lshlrev_b32 v{V_T0}, 5, v{V_T0}")
    e(f"    v_lshl_add_u32 v{V_T0}, v{V_T1}, 2, v{V_T0}")
    e(f"    v_lshl_add_u32 v{V_T0}, v{V_G}, 7, v{V_T0}")
    e(f"    s_mul_i32 s{S_TMP}, s{S_W}, {LDS_HS}")
    e(f"    v_add_u32 v{V_T0}, s{S_TMP}, v{V_T0}")
    e(f"    s_lshl_b32 s{S_TMP}, s{S_W}, 3")
    e(f"    s_add_u32 s{S_TMP}, s{S_TMP}, {LDS_ML}")
    e(f"    v_mov_b32 v{V_T1}, s{S_TMP}")
    ML = T
    OO = T + 16
    for w in range(8):
        e(f"    ds_read_b64 v[{ML+2*w}:{ML+2*w+1}], v{V_T1} offset:{w*64}")
    for w in range(8):
        e(f"    v_add_u32 v{S+w}, {w*LDS_WS}, v{V_T0}")
    for w in range(8):
        e(f"    ds_read2_b32 v[{OO+2*w}:{OO+2*w+1}], v{S+w} offset0:0 offset1:4")
    e(f"    s_waitcnt lgkmcnt(8)")
    e(f"    v_max3_f32 v{V_MX}, v{ML}, v{ML+2}, v{ML+4}")
    e(f"    v_max3_f32 v{V_MX}, v{V_MX}, v{ML+6}, v{ML+8}")
    e(f"    v_max3_f32 v{V_MX}, v{V_MX}, v{ML+10}, v{ML+12}")
    e(f"    v_max_f32 v{V_MX}, v{V_MX}, v{ML+14}")
    for w in range(8):
        e(f"    v_sub_f32 v{ML+2*w}, v{ML+2*w}, v{V_MX}")
    for w in range(8):
        e(f"    v_exp_f32 v{ML+2*w}, v{ML+2*w}")
    e(f"    s_waitcnt lgkmcnt(0)")
    A0, A1, AL = ACC, ACC+1, ACC+3
    e(f"    v_mul_f32 v{AL}, v{ML}, v{ML+1}")
    e(f"    v_mul_f32 v{A0}, v{ML}, v{OO}")
    e(f"    v_mul_f32 v{A1}, v{ML}, v{OO+1}")
    for w in range(1, 8):
        e(f"    v_fmac_f32 v{AL}, v{ML+2*w}, v{ML+2*w+1}")
        e(f"    v_fmac_f32 v{A0}, v{ML+2*w}, v{OO+2*w}")
        e(f"    v_fmac_f32 v{A1}, v{ML+2*w}, v{OO+2*w+1}")
    e(f"    v_mov_b32 v{ACC+2}, v{V_MX}")
    e(f"    s_lshl_b32 s{S_TMP}, s{S_KVH}, 3")
    e(f"    s_add_u32 s{S_TMP}, s{S_TMP}, s{S_W}")
    e(f"    s_lshl_b32 s{S_TMP}, s{S_TMP}, 6")
    e(f"    s_add_u32 s{S_TMP}, s{S_TMP}, s{S_SPLIT}")
    e(f"    s_lshl_b32 s{S_TMP2}, s{S_TMP}, 9")
    e(f"    v_lshlrev_b32 v{V_T0}, 3, v{V_LANE}")
    e(f"    buffer_store_dwordx2 v[{A0}:{A1}], v{V_T0}, s[32:35], s{S_TMP2} offen")
    e(f"    s_lshl_b32 s{S_TMP}, s{S_TMP}, 3")
    e(f"    s_add_u32 s{S_TMP}, s{S_TMP}, {WS_ML}")
    e(f"    s_mov_b64 exec, 1")
    e(f"    buffer_store_dwordx2 v[{ACC+2}:{ACC+3}], v{V_T0}, s[32:35], s{S_TMP} offen")
    stamp_at(13)
    e("    s_waitcnt vmcnt(0)")
    stamp_at(14)
    dump_stamps()
    e("L_end1:")
    e("    s_endpgm")

def kernel2():
    e(".p2align 8")
    e(".globl attn_comb_kernel")
    e(".type attn_comb_kernel,@function")
    e("attn_comb_kernel:")
    e("    s_cmp_ge_u32 s2, 128")
    e("    s_cbranch_scc1 L_end2")
    e("    s_load_dwordx2 s[4:5], s[0:1], 40")
    e("    s_load_dwordx2 s[6:7], s[0:1], 56")
    e("    s_lshr_b32 s8, s2, 2")
    e("    s_and_b32 s9, s2, 3")
    e("    v_lshrrev_b32 v1, 3, v0")
    e("    v_and_b32 v2, 7, v0")
    e("    v_lshlrev_b32 v3, 12, v1")
    e("    v_lshl_add_u32 v3, v2, 4, v3")
    e("    s_lshl_b32 s10, s8, 15")
    e("    s_lshl_b32 s11, s9, 7")
    e("    s_add_u32 s10, s10, s11")
    e("    v_lshlrev_b32 v4, 6, v1")
    e("    s_lshl_b32 s11, s8, 9")
    e(f"    s_add_u32 s11, s11, {WS_ML}")
    e("    s_waitcnt lgkmcnt(0)")
    for (d, p, n) in ((12, 6, 0x200000), (16, 4, 8192)):
        e(f"    s_mov_b32 s{d}, s{p}")
        e(f"    s_and_b32 s{d+1}, s{p+1}, 0xffff")
        e(f"    s_mov_b32 s{d+2}, {hex(n)}")
        e(f"    s_mov_b32 s{d+3}, 0x00020000")
    ML = 8
    OO = 24
    for k in range(4):
        e(f"    buffer_load_dwordx4 {vr(ML+4*k,4)}, v4, s[12:15], s11 offen offset:{k*16}")
    for i in range(8):
        e(f"    buffer_load_dwordx4 {vr(OO+4*i,4)}, v3, s[12:15], s10 offen offset:{i*512}")
    e("    s_waitcnt vmcnt(8)")
    e(f"    v_max3_f32 v5, v{ML}, v{ML+2}, v{ML+4}")
    e(f"    v_max3_f32 v5, v5, v{ML+6}, v{ML+8}")
    e(f"    v_max3_f32 v5, v5, v{ML+10}, v{ML+12}")
    e(f"    v_max_f32 v5, v5, v{ML+14}")
    e("    s_nop 1")
    e("    v_max_f32_dpp v5, v5, v5 row_ror:8 row_mask:0xf bank_mask:0xf")
    e("    v_mov_b32 v6, v5")
    e("    s_nop 1")
    e("    v_permlane16_swap_b32 v5, v6")
    e("    v_max_f32 v5, v5, v6")
    e("    v_mov_b32 v6, v5")
    e("    s_nop 1")
    e("    v_permlane32_swap_b32 v5, v6")
    e("    v_max_f32 v5, v5, v6")
    for i in range(8):
        e(f"    v_sub_f32 v{ML+2*i}, v{ML+2*i}, v5")
    for i in range(8):
        e(f"    v_exp_f32 v{ML+2*i}, v{ML+2*i}")
    R = 56
    e("    s_nop 0")
    e(f"    v_mul_f32 v{R+4}, v{ML}, v{ML+1}")
    for i in range(1, 8):
        e(f"    v_fmac_f32 v{R+4}, v{ML+2*i}, v{ML+2*i+1}")
    for i in range(8):
        e(f"    s_waitcnt vmcnt({7-i})")
        for k in range(4):
            if i == 0:
                e(f"    v_mul_f32 v{R+k}, v{ML}, v{OO+k}")
            else:
                e(f"    v_fmac_f32 v{R+k}, v{ML+2*i}, v{OO+4*i+k}")
    e("    s_nop 1")
    for k in range(5):
        e(f"    v_add_f32_dpp v{R+k}, v{R+k}, v{R+k} row_ror:8 row_mask:0xf bank_mask:0xf")
    for k in range(5):
        e(f"    v_mov_b32 v{64+k}, v{R+k}")
    e("    s_nop 1")
    for k in range(5):
        e(f"    v_permlane16_swap_b32 v{R+k}, v{64+k}")
    for k in range(5):
        e(f"    v_add_f32 v{R+k}, v{R+k}, v{64+k}")
    for k in range(5):
        e(f"    v_mov_b32 v{64+k}, v{R+k}")
    e("    s_nop 1")
    for k in range(5):
        e(f"    v_permlane32_swap_b32 v{R+k}, v{64+k}")
    for k in range(5):
        e(f"    v_add_f32 v{R+k}, v{R+k}, v{64+k}")
    e(f"    v_rcp_f32 v{R+4}, v{R+4}")
    e("    s_nop 0")
    for k in range(4):
        e(f"    v_mul_f32 v{R+k}, v{R+k}, v{R+4}")
    e(f"    v_cvt_pk_bf16_f32 v{R}, v{R}, v{R+1}")
    e(f"    v_cvt_pk_bf16_f32 v{R+1}, v{R+2}, v{R+3}")
    e("    s_lshl_b32 s10, s8, 8")
    e("    s_lshl_b32 s11, s9, 6")
    e("    s_add_u32 s10, s10, s11")
    e("    v_lshlrev_b32 v3, 3, v2")
    e("    s_mov_b64 exec, 0xff")
    e(f"    buffer_store_dwordx2 v[{R}:{R+1}], v3, s[16:19], s10 offen")
    if "dbg2" in sys.argv:
        e("    s_cmp_lg_u32 s2, 0")
        e("    s_cbranch_scc1 L_end2")
        e("    s_load_dwordx2 s[20:21], s[0:1], 48")
        e("    s_mov_b32 s14, 0x10000000")
        e("    s_mov_b64 exec, 0xffff")
        e("    v_mul_u32_u24 v3, 8704, v0")
        e("    s_mov_b32 s10, 0x8000000")
        e("    buffer_load_dword v4, v3, s[12:15], s10 offen offset:48")
        e("    buffer_load_dword v5, v3, s[12:15], s10 offen offset:0")
        e("    v_lshlrev_b32 v6, 2, v0")
        e("    s_waitcnt vmcnt(0) lgkmcnt(0)")
        e("    v_sub_u32 v4, v4, v5")
        e("    global_store_dword v6, v4, s[20:21]")
    e("L_end2:")
    e("    s_endpgm")

def desc(name, nv, ns):
    e(".p2align 6")
    e(f".amdhsa_kernel {name}")
    e(f"  .amdhsa_next_free_vgpr {nv}")
    e(f"  .amdhsa_next_free_sgpr {ns}")
    e(f"  .amdhsa_accum_offset {(nv+3)//4*4}")
    e("  .amdhsa_group_segment_fixed_size 0")
    e("  .amdhsa_kernarg_size 64")
    e("  .amdhsa_user_sgpr_count 2")
    e("  .amdhsa_user_sgpr_kernarg_segment_ptr 1")
    e("  .amdhsa_system_sgpr_workgroup_id_x 1")
    e(".end_amdhsa_kernel")

out.append(HEADER.rstrip("\n"))
e(f"; @launch kernel=attn_part_kernel grid=(256,1,1) block=(512,1,1) lds={LDS_BYTES}")
e(f"; @launch kernel=attn_comb_kernel grid=(128,1,1) block=(64,1,1) lds=0")
e('.amdgcn_target "amdgcn-amd-amdhsa--gfx950"')
e(".text")
kernel1()
kernel2()
e('.section .rodata,"a"')
desc("attn_part_kernel", NV1, 100)
desc("attn_comb_kernel", 72, 32)

open(sys.argv[1], "w").write("\n".join(out) + "\n")
```
